```python
import torch

def _softmax(x, axis=-1):
    return torch.softmax(x, dim=axis)
def _gelu(x):
    return torch.nn.functional.gelu(x, approximate="tanh")
def _silu(x):
    return torch.nn.functional.silu(x)
def _sigmoid(x):
    return torch.sigmoid(x)
def _layernorm(x, axis=-1, eps=1e-5):
    m = x.mean(dim=axis, keepdim=True)
    v = x.var(dim=axis, keepdim=True, unbiased=False)
    return (x - m) / torch.sqrt(v + eps)
def _scatter_add(tgt, idx, src, axis=0):
    return tgt.clone().index_add_(axis, idx, src)
def _segment_sum(src, seg, n):
    out = torch.zeros((n,) + src.shape[1:], dtype=src.dtype)
    return out.index_add_(0, seg, src)
def _pad(x, pw):
    flat = tuple(v for pair in reversed(pw) for v in pair)
    return torch.nn.functional.pad(x, flat)

kernel_name = 'concat_heads__mha_block_cached__gqa_block_cached__near_ridge'

def setup_inputs():

    _w = (lambda a: (lambda t: t.to(torch.bfloat16) if t.is_floating_point() else t)(torch.as_tensor(a)))
    def _A_setup():
        B, Sq, D = 8, 96, 576
        H, Sk, Dh = 32, 1024, 128
        return {
            "x": _w((lambda *s: torch.randn(*s, dtype=torch.bfloat16) * 0.8)(B, Sq, D)),
            "k_cache": _w((lambda *s: torch.randn(*s, dtype=torch.bfloat16) * 0.8)(B, H, Sk, Dh)),
            "v_cache": _w((lambda *s: torch.randn(*s, dtype=torch.bfloat16) * 0.05)(B, H, Sk, Dh)),
            "wq": _w((lambda *s: torch.randn(*s, dtype=torch.bfloat16) * 0.8)(D, H * Dh) * (D ** -0.5)),
            "wo": _w((lambda *s: torch.randn(*s, dtype=torch.bfloat16) * 0.05)(H * Dh, D) * ((H * Dh) ** -0.5)),
        }
    _A_in = _A_setup()

    def _B_setup():
        B, Sq, D = 8, 96, 576
        Hq, Hkv, Sk, Dh = 32, 32, 1024, 128
        assert Hq % Hkv == 0, (Hq, Hkv)
        return {
            "x": _w((lambda *s: torch.randn(*s, dtype=torch.bfloat16) * 0.8)(B, Sq, D)),
            "k_cache": _w((lambda *s: torch.randn(*s, dtype=torch.bfloat16) * 0.8)(B, Hkv, Sk, Dh)),
            "v_cache": _w((lambda *s: torch.randn(*s, dtype=torch.bfloat16) * 0.05)(B, Hkv, Sk, Dh)),
            "wq": _w((lambda *s: torch.randn(*s, dtype=torch.bfloat16) * 0.8)(D, Hq * Dh) * (D ** -0.5)),
            "wo": _w((lambda *s: torch.randn(*s, dtype=torch.bfloat16) * 0.05)(Hq * Dh, D) * ((Hq * Dh) ** -0.5)),
        }
    _B_in = _B_setup()

    return {
        "A_x": _A_in["x"],
        "A_k_cache": _A_in["k_cache"],
        "A_v_cache": _A_in["v_cache"],
        "A_wq": _A_in["wq"],
        "A_wo": _A_in["wo"],
        "B_x": _B_in["x"],
        "B_k_cache": _B_in["k_cache"],
        "B_v_cache": _B_in["v_cache"],
        "B_wq": _B_in["wq"],
        "B_wo": _B_in["wo"],
    }

def reference(A_x, A_k_cache, A_v_cache, A_wq, A_wo, B_x, B_k_cache, B_v_cache, B_wq, B_wo):
    def _A_ref(x, k_cache, v_cache, wq, wo):
        B, Sq, D = x.shape
        H, Dh = 32, 128
        q = (lambda x, *d: x.permute(*d))((x @ wq).reshape(B, Sq, H, Dh), 0, 2, 1, 3)
        scores = torch.einsum("bhqd,bhkd->bhqk", q, k_cache) * (Dh ** -0.5)
        p = _softmax(scores, axis=-1)
        o = torch.einsum("bhqk,bhkd->bhqd", p, v_cache)
        return (lambda x, *d: x.permute(*d))(o, 0, 2, 1, 3).reshape(B, Sq, H * Dh) @ wo

    def _B_ref(x, k_cache, v_cache, wq, wo):
        B, Sq, D = x.shape
        Hq, Dh = 32, 128
        Hkv = k_cache.shape[1]
        rep = Hq // Hkv
        q = (lambda x, *d: x.permute(*d))((x @ wq).reshape(B, Sq, Hq, Dh), 0, 2, 1, 3)
        k = (lambda x, n, axis: torch.repeat_interleave(x, n, dim=axis))(k_cache, rep, axis=1)
        v = (lambda x, n, axis: torch.repeat_interleave(x, n, dim=axis))(v_cache, rep, axis=1)
        scores = torch.einsum("bhqd,bhkd->bhqk", q, k) * (Dh ** -0.5)
        p = _softmax(scores, axis=-1)
        o = torch.einsum("bhqk,bhkd->bhqd", p, v)
        return (lambda x, *d: x.permute(*d))(o, 0, 2, 1, 3).reshape(B, Sq, Hq * Dh) @ wo

    a = _A_ref(A_x, A_k_cache, A_v_cache, A_wq, A_wo)
    b = _B_ref(B_x, B_k_cache, B_v_cache, B_wq, B_wo)
    return torch.concatenate([a, b], axis=-1)
```

```python
NAME = "concat_heads__mha_block_cached__gqa_block_cached__near_ridge"
import struct

def f2u(x):
    return struct.unpack("<I", struct.pack("<f", x))[0]

def magic(div, maxv, shift=16):
    m = ((1 << shift) + div - 1) // div
    for p in range(maxv):
        assert (p * m) >> shift == p // div, (div, maxv, p)
    return m

class E:
    def __init__(self):
        self.L = []
        self.lg = []
        self.vm = []
    def i(self, s):
        self.L.append("  " + s)
    def c(self, s):
        self.L.append("  ; " + s)
    def lab(self, s):
        self.L.append(s + ":")
    def raw(self, s):
        self.L.append(s)
    def ds(self, s, tag=None):
        self.i(s); self.lg.append(tag)
    def wds(self, tag):
        idx = [k for k, t in enumerate(self.lg) if t == tag]
        if not idx:
            return
        idx = idx[-1]
        n = len(self.lg) - 1 - idx
        self.i(f"s_waitcnt lgkmcnt({min(n, 15)})")
        self.lg = self.lg[idx + 1:]
    def wds0(self, force=False):
        if self.lg or force:
            self.i("s_waitcnt lgkmcnt(0)")
        self.lg = []
    def vmem(self, s, tag=None):
        self.i(s); self.vm.append(tag)
    def wvm(self, tag):
        idx = [k for k, t in enumerate(self.vm) if t == tag]
        if not idx:
            return
        idx = idx[-1]
        n = len(self.vm) - 1 - idx
        self.i(f"s_waitcnt vmcnt({min(n, 63)})")
        self.vm = self.vm[idx + 1:]
    def wvm0(self):
        self.i("s_waitcnt vmcnt(0)")
        self.vm = []
    def nop(self, n):
        while n > 0:
            k = min(n, 16)
            self.i(f"s_nop {k-1}")
            n -= k
    def text(self):
        return "\n".join(self.L) + "\n"

def v(a, n=1):
    return f"v{a}" if n == 1 else f"v[{a}:{a+n-1}]"
def s(a, n=1):
    return f"s{a}" if n == 1 else f"s[{a}:{a+n-1}]"

def kernel_head(e, name):
    e.raw(f".globl {name}")
    e.raw(".p2align 8")
    e.raw(f".type {name},@function")
    e.lab(name)

def kernel_desc(name, vgpr, sgpr=102, accum=None):
    if accum is None:
        accum = (vgpr + 3) // 4 * 4
    return "\n".join([
        ".p2align 6",
        f".amdhsa_kernel {name}",
        f"  .amdhsa_next_free_vgpr {vgpr}",
        f"  .amdhsa_next_free_sgpr {sgpr}",
        f"  .amdhsa_accum_offset {accum}",
        "  .amdhsa_group_segment_fixed_size 0",
        "  .amdhsa_kernarg_size 104",
        "  .amdhsa_user_sgpr_count 2",
        "  .amdhsa_user_sgpr_kernarg_segment_ptr 1",
        "  .amdhsa_system_sgpr_workgroup_id_x 1",
        ".end_amdhsa_kernel"]) + "\n"

HEADER = open("cdna_kernels/" + NAME + ".s.ref").read().split("; Override launch")[0]
```

```python
import sys, math
from common import *

SLOT = 32768
NSLOT = 5
O_BYTES = 2 * 8 * 32 * 24576
POFF = O_BYTES
WS_BYTES = 289079296
CSCALE = math.log2(math.e) / math.sqrt(128.0)
THRESH = 2.0 ** 30

S_PTR = 16
SRD_X, SRD_K, SRD_V, SRD_W, SRD_WS, SRD_OUT = 44, 48, 52, 56, 60, 64
S_WAVE, S_BR, S_J, S_B, S_Q4 = 4, 5, 6, 7, 8
S_T0, S_T1, S_T2, S_T3 = 9, 10, 11, 12
S_PAIR0, S_PAIR1 = 68, 69
S_H0, S_H1 = 70, 71
S_SLOT, S_CNT, S_RND = 72, 73, 74
S_QB, S_KH = 75, 76
S_SO = 77
S_THR = 78
S_C = 79
S_OB = 80

def common_prologue(e, grid, wq_or_wo):
    e.i(f"s_cmp_ge_u32 s2, {grid}")
    e.i("s_cbranch_scc1 " + e.end_label)
    e.i("s_load_dwordx16 s[16:31], s[0:1], 0")
    e.i("s_load_dwordx8 s[32:39], s[0:1], 64")
    e.i("s_load_dwordx2 s[40:41], s[0:1], 96")
    e.i("v_lshrrev_b32 v1, 6, v0")
    e.i(f"s_and_b32 s{S_T0}, s2, 7")
    e.i(f"v_readfirstlane_b32 s{S_WAVE}, v1")
    e.i(f"s_lshr_b32 s{S_BR}, s{S_T0}, 2")
    e.i(f"s_and_b32 s{S_J}, s{S_T0}, 3")
    e.i(f"s_lshr_b32 s{S_T1}, s2, 3")
    e.i(f"s_lshr_b32 s{S_B}, s{S_T1}, 2")
    e.i(f"s_and_b32 s{S_Q4}, s{S_T1}, 3")
    e.i("v_and_b32 v0, 63, v0")
    e.i("s_waitcnt lgkmcnt(0)")
    e.i(f"s_cmp_eq_u32 s{S_BR}, 0")
    e.i(f"s_cselect_b64 s[{SRD_X}:{SRD_X+1}], s[16:17], s[26:27]")
    e.i(f"s_cselect_b64 s[{SRD_K}:{SRD_K+1}], s[18:19], s[28:29]")
    e.i(f"s_cselect_b64 s[{SRD_V}:{SRD_V+1}], s[20:21], s[30:31]")
    if wq_or_wo == "wq":
        e.i(f"s_cselect_b64 s[{SRD_W}:{SRD_W+1}], s[22:23], s[32:33]")
    else:
        e.i(f"s_cselect_b64 s[{SRD_W}:{SRD_W+1}], s[24:25], s[34:35]")
    e.i(f"s_mov_b64 s[{SRD_WS}:{SRD_WS+1}], s[40:41]")
    for srd, nb in ((SRD_X, 884736), (SRD_K, 1 << 26), (SRD_V, 1 << 26), (SRD_W, 4718592), (SRD_WS, WS_BYTES)):
        e.i(f"s_mov_b32 s{srd+2}, {nb}")
        e.i(f"s_mov_b32 s{srd+3}, 0x20000")

def schedule():
    items = []
    for r in range(2):
        items += [("Q", r, c) for c in range(9)] + [("KV", r, t) for t in range(16)]
    epochs = []
    cons = {}
    special = {}
    for r in range(2):
        for c in range(9):
            cons[r * 25 + c] = len(epochs); epochs.append(r * 25 + c)
        special[("QXw", r)] = len(epochs); epochs.append(None)
        for t in range(16):
            cons[r * 25 + 9 + t] = len(epochs); epochs.append(r * 25 + 9 + t)
        special[("CBw", r)] = len(epochs); epochs.append(None)
    epochs.append(None)
    free = {}
    for n in range(50):
        free[n] = cons[n] + 1
    for r in range(2):
        free[r * 25 + 8] = cons[r * 25 + 9] + 1
        free[r * 25 + 23] = special[("CBw", r)] + 2
        free[r * 25 + 24] = special[("CBw", r)] + 2
    issue = {}
    for n in range(50):
        issue[n] = -1 if n < NSLOT else max(free[n - NSLOT], issue[n - 1])
        assert issue[n] < cons[n]
    return items, epochs, issue

def emit_loader(e, which, kvflags, wflags):
    items, epochs, issue = schedule()
    VO = 2
    e.i("v_lshrrev_b32 v10, 4, v0")
    e.i("v_and_b32 v11, 15, v0")
    if which == 0:
        for n in range(4):
            e.i(f"v_add_u32 v12, {4*n}, v10")
            e.i("v_xor_b32 v12, v12, v11")
            e.i("v_lshlrev_b32 v12, 4, v12")
            e.i(f"v_lshl_add_u32 v{2+n}, v10, 8, v12")
        e.i("v_lshlrev_b32 v12, 2, v10")
        e.i("v_xor_b32 v12, v12, v11")
        e.i("v_lshlrev_b32 v12, 4, v12")
        e.i("v_lshl_add_u32 v6, v10, 13, v12")
        for n in range(1, 4):
            e.i(f"v_add_u32 v{6+n}, {n*(32768-1024)}, v6")
    else:
        e.i("v_lshlrev_b32 v12, 2, v10")
        e.i("v_xor_b32 v12, v12, v11")
        e.i("v_lshlrev_b32 v12, 4, v12")
        e.i("v_lshl_add_u32 v2, v10, 8, v12")
        e.i("v_lshrrev_b32 v13, 3, v0")
        e.i("v_mul_u32_u24 v13, 1152, v13")
        e.i("v_and_b32 v14, 7, v0")
        for n in range(4):
            e.i(f"v_add_u32 v12, {4*n}, v10")
            e.i("v_and_b32 v12, 7, v12")
            e.i("v_xor_b32 v12, v12, v14")
            e.i("v_lshl_add_u32 v12, v12, 4, v13")
            e.i(f"v_add_u32 v{6+n}, {n*(9216-1024)}, v12")
        e.i(f"s_mul_i32 s{S_T3}, s{S_B}, 110592")
    def do_issue(n):
        kind, r, idx = items[n]
        slot = (n % NSLOT) * SLOT
        e.c(f"issue item {n} {items[n]} slot {n % NSLOT}")
        if kind == "KV":
            srd = SRD_K if which == 0 else SRD_V
            for g in range(4):
                e.i(f"s_add_u32 s{S_SO}, s{S_PAIR0 + r}, {idx*16384 + g*4096}")
                e.i(f"s_mov_b32 m0, {slot + which*16384 + g*4096}")
                e.i("s_nop 0")
                for k in range(4):
                    vo = 2 + k if which == 0 else 2
                    e.vmem(f"buffer_load_dwordx4 v{vo}, s[{srd}:{srd+3}], s{S_SO} offen offset:{k*1024} {kvflags} lds", n)
        elif which == 0:
            for g in range(4):
                e.i(f"s_add_u32 s{S_SO}, s{S_H0 + r}, {(64*idx + 16*g)*8192}")
                e.i(f"s_mov_b32 m0, {slot + g*4096}")
                e.i("s_nop 0")
                for k in range(4):
                    e.vmem(f"buffer_load_dwordx4 v{6+k}, s[{SRD_W}:{SRD_W+3}], s{S_SO} offen offset:{k*1024} {wflags} lds", n)
        else:
            for g in range(3):
                e.i(f"s_add_u32 s{S_SO}, s{S_T3}, {g*36864 + idx*128}")
                e.i(f"s_mov_b32 m0, {slot + 16384 + g*4096}")
                e.i("s_nop 0")
                for k in range(4):
                    e.vmem(f"buffer_load_dwordx4 v{6+k}, s[{SRD_X}:{SRD_X+3}], s{S_SO} offen offset:{k*1024} {wflags} lds", n)
    for n in range(50):
        if issue[n] == -1:
            do_issue(n)
    for ep, it in enumerate(epochs):
        e.c(f"epoch {ep} item {it}")
        if it is not None:
            e.wvm(it)
        e.i("s_barrier")
        for n in range(50):
            if issue[n] == ep:
                do_issue(n)
    e.i("s_endpgm")

V_K0, V_V0, V_W0, V_X0 = 1, 2, 3, 4
V_QXW, V_QXR, V_CBW, V_CBR, V_MLW, V_MLR, V_OST = 5, 6, 7, 8, 9, 10, 11
V_L, V_SA, V_SB = 12, 13, 14
V_T = 16
V_A = 24
V_VF = 32
V_O = 64
V_Q = 128
V_NM = 160
V_S = 176
V_P = 192
V_KF = 200
V_VA = 232
NV1 = 240

def mfma32(e, d, a, b, c):
    cs = c if isinstance(c, str) else v(c, 16)
    e.i(f"v_mfma_f32_32x32x16_bf16 {v(d,16)}, {v(a,4)}, {v(b,4)}, {cs}")

def emit_exp_block(e):
    T = V_T
    def ex(pair):
        t = T + 2 * (pair & 1)
        e.i(f"v_exp_f32 v{t}, v{V_S + 2*pair}")
        e.i(f"v_exp_f32 v{t+1}, v{V_S + 2*pair + 1}")
    def fin(pair):
        t = T + 2 * (pair & 1)
        if pair == 0:
            e.i(f"v_mov_b32 v{V_SA}, v{t}")
            e.i(f"v_mov_b32 v{V_SB}, v{t+1}")
        else:
            e.i(f"v_add_f32 v{V_SA}, v{V_SA}, v{t}")
            e.i(f"v_add_f32 v{V_SB}, v{V_SB}, v{t+1}")
        e.i(f"v_cvt_pk_bf16_f32 v{V_P + pair}, v{t}, v{t+1}")
    ex(0)
    for p in range(8):
        if p + 1 < 8:
            ex(p + 1)
        else:
            e.i("s_nop 0")
        fin(p)
    e.i(f"v_add_f32 v{V_SA}, v{V_SA}, v{V_SB}")

def emit_rowmax(e, dst):
    t = dst
    e.i(f"v_max3_f32 v{t}, v{V_S}, v{V_S+1}, v{V_S+2}")
    for k in range(3, 15, 2):
        e.i(f"v_max3_f32 v{t}, v{t}, v{V_S+k}, v{V_S+k+1}")
    e.i(f"v_max_f32 v{t}, v{t}, v{V_S+15}")
    e.i(f"v_mov_b32 v{t+1}, v{t}")
    e.nop(2)
    e.i(f"v_permlane32_swap_b32 v{t}, v{t+1}")
    e.nop(2)
    e.i(f"v_max_f32 v{t}, v{t}, v{t+1}")

def emit_addr_kv(e):
    e.i(f"v_add_u32 v{V_A}, s{S_SLOT}, v{V_K0}")
    for k in range(1, 8):
        e.i(f"v_xor_b32 v{V_A+k}, {32*k}, v{V_A}")
    e.i(f"v_add_u32 v{V_VA}, s{S_SLOT}, v{V_V0}")
    for k in range(1, 4):
        e.i(f"v_xor_b32 v{V_VA+k}, {64*k}, v{V_VA}")

def emit_slot_advance(e):
    e.i(f"s_add_u32 s{S_SLOT}, s{S_SLOT}, {SLOT}")
    e.i(f"s_cmp_eq_u32 s{S_SLOT}, {SLOT*NSLOT}")
    e.i(f"s_cselect_b32 s{S_SLOT}, 0, s{S_SLOT}")

def emit_kv_step(e, first, tagp):
    for k in range(8):
        e.ds(f"ds_read_b128 {v(V_KF+4*k,4)}, v{V_A+k}", ("k", k))
    vreads = [(t, lb, u) for t in range(2) for lb in range(4) for u in range(2)]
    def vread(x):
        t, lb, u = x
        f = t * 4 + lb
        e.ds(f"ds_read_b64_tr_b16 {v(V_VF+4*f+2*u,2)}, v{V_VA+lb} offset:{4096*t+2048*u}", ("v", f))
    vi = 0
    for k in range(8):
        e.wds(("k", k))
        c = ("0" if first else V_NM) if k == 0 else V_S
        mfma32(e, V_S, V_KF + 4*k, V_Q + 4*k, c)
        if k >= 2:
            vread(vreads[vi]); vi += 1
            vread(vreads[vi]); vi += 1
    nst = 0
    while vi < 16:
        vread(vreads[vi]); vi += 1; nst += 1
    e.nop(12 - 2 - nst)
    if first:
        emit_rowmax(e, V_T + 4)
        for k in range(16):
            e.i(f"v_sub_f32 v{V_S+k}, v{V_S+k}, v{V_T+4}")
        e.i(f"v_sub_f32 v{V_NM}, 0, v{V_T+4}")
        for k in range(1, 16):
            e.i(f"v_mov_b32 v{V_NM+k}, v{V_NM}")
        emit_exp_block(e)
        e.i(f"v_mov_b32 v{V_L}, v{V_SA}")
    else:
        emit_exp_block(e)
        e.i(f"v_cmp_nge_f32 vcc, s{S_THR}, v{V_SA}")
        e.i(f"s_cbranch_vccnz {tagp}_rare")
        e.lab(f"{tagp}_back")
        e.i(f"v_add_f32 v{V_L}, v{V_L}, v{V_SA}")
    e.i("s_nop 0")
    for t in range(2):
        for lb in range(4):
            f = t * 4 + lb
            e.wds(("v", f))
            c = "0" if (first and t == 0) else V_O + 16*lb
            mfma32(e, V_O + 16*lb, V_VF + 4*f, V_P + 4*t, c)
    assert not e.lg

def emit_rare(e, tagp):
    e.lab(f"{tagp}_rare")
    emit_rowmax(e, V_T + 4)
    d = V_T + 4
    e.i(f"v_max_f32 v{d}, 0, v{d}")
    e.i(f"v_sub_f32 v{d+1}, 0, v{d}")
    e.i(f"v_exp_f32 v{d+1}, v{d+1}")
    for k in range(16):
        e.i(f"v_sub_f32 v{V_S+k}, v{V_S+k}, v{d}")
    for k in range(16):
        e.i(f"v_sub_f32 v{V_NM+k}, v{V_NM+k}, v{d}")
    for k in range(64):
        e.i(f"v_mul_f32 v{V_O+k}, v{V_O+k}, v{d+1}")
    e.i(f"v_mul_f32 v{V_L}, v{V_L}, v{d+1}")
    emit_exp_block(e)
    e.i(f"s_branch {tagp}_back")

def emit_q_step(e, first):
    ACC = V_O
    AF = V_KF
    BF = V_VF
    for sp in range(4):
        e.ds(f"ds_read_b128 {v(BF+4*sp,4)}, v{V_A+2+sp}", ("b", sp))
        for lb in range(2):
            f = sp * 2 + lb
            for u in range(2):
                e.ds(f"ds_read_b64_tr_b16 {v(AF+4*f+2*u,2)}, v{V_A+lb} offset:{4096*sp+1024*u}", ("a", f))
        if sp >= 1:
            sq = sp - 1
            for lb in range(2):
                e.wds(("a", sq*2+lb))
                mfma32(e, ACC + 16*lb, AF + 4*(sq*2+lb), BF + 4*sq, "0" if (first and sq == 0) else ACC + 16*lb)
    for lb in range(2):
        e.wds(("a", 6+lb))
        mfma32(e, ACC + 16*lb, AF + 4*(6+lb), BF + 12, ACC + 16*lb)
    assert not e.lg

def emit_addr_q(e):
    e.i(f"v_add_u32 v{V_A}, s{S_SLOT}, v{V_W0}")
    e.i(f"v_xor_b32 v{V_A+1}, 64, v{V_A}")
    e.i(f"v_add_u32 v{V_A+2}, s{S_SLOT}, v{V_X0}")
    for k in range(1, 4):
        e.i(f"v_xor_b32 v{V_A+2+k}, {32*k}, v{V_A+2}")

def emit_cb_write(e):
    t = V_T
    e.i(f"v_mov_b32 v{t}, v{V_L}")
    e.i(f"v_mov_b32 v{t+1}, v{V_L}")
    e.nop(2)
    e.i(f"v_permlane32_swap_b32 v{t}, v{t+1}")
    e.nop(2)
    e.i(f"v_add_f32 v{V_L}, v{t}, v{t+1}")
    e.i(f"v_mov_b32 v{t+2}, v{V_NM}")
    e.i(f"v_mov_b32 v{t+3}, v{V_L}")
    e.ds(f"ds_write_b64 v{V_MLW}, {v(t+2,2)}")
    for jj in range(8):
        e.ds(f"ds_write_b128 v{V_CBW}, {v(V_O+32+4*jj,4)} offset:{jj*1024}")
    e.wds0()

def emit_cb_read(e):
    t = V_T
    R = V_KF
    e.ds(f"ds_read_b64 {v(t,2)}, v{V_MLR}", "ml")
    for jj in range(8):
        e.ds(f"ds_read_b128 {v(R+4*jj,4)}, v{V_CBR} offset:{jj*1024}", ("o", jj))
    e.wds("ml")
    e.i(f"v_min_f32 v{t+2}, v{t}, v{V_NM}")
    e.i(f"v_sub_f32 v{t+3}, v{t+2}, v{V_NM}")
    e.i(f"v_sub_f32 v{t+4}, v{t+2}, v{t}")
    e.i(f"v_exp_f32 v{t+3}, v{t+3}")
    e.i(f"v_exp_f32 v{t+4}, v{t+4}")
    e.i("s_nop 0")
    e.i(f"v_mul_f32 v{t+5}, v{V_L}, v{t+3}")
    e.i(f"v_fmac_f32 v{t+5}, v{t+1}, v{t+4}")
    e.i(f"v_rcp_f32 v{t+5}, v{t+5}")
    e.i("s_nop 0")
    e.i(f"v_mul_f32 v{t+3}, v{t+3}, v{t+5}")
    e.i(f"v_mul_f32 v{t+4}, v{t+4}, v{t+5}")
    for k in range(32):
        e.i(f"v_mul_f32 v{V_O+k}, v{V_O+k}, v{t+3}")
    for jj in range(8):
        e.wds(("o", jj))
        for k in range(4):
            e.i(f"v_fmac_f32 v{V_O+4*jj+k}, v{R+4*jj+k}, v{t+4}")
    for k in range(16):
        e.i(f"v_cvt_pk_bf16_f32 v{V_VF+k}, v{V_O+2*k}, v{V_O+2*k+1}")
    for f in range(4):
        e.vmem(f"buffer_store_dwordx4 {v(V_VF+4*f,4)}, v{V_OST}, s[{SRD_WS}:{SRD_WS+3}], s{S_OB} offen offset:{f*1024}")

def emit_attn(e):
    e.i(f"s_cmp_ge_u32 s{S_WAVE}, 3")
    e.i(f"s_cselect_b32 s{S_KH}, 1, 0")
    e.i(f"s_mul_i32 s{S_T0}, s{S_KH}, 3")
    e.i(f"s_sub_u32 s{S_QB}, s{S_WAVE}, s{S_T0}")
    r, hf, G1, i2, i3, tmp, tmp2 = 16, 17, 18, 19, 20, 21, 22
    e.i(f"v_and_b32 v{r}, 31, v0")
    e.i(f"v_lshrrev_b32 v{hf}, 5, v0")
    e.i(f"v_bfe_u32 v{G1}, v0, 4, 1")
    e.i(f"v_bfe_u32 v{i2}, v0, 2, 2")
    e.i(f"v_and_b32 v{i3}, 3, v0")
    e.i(f"s_lshl_b32 s{S_T0}, s{S_KH}, 13")
    e.i(f"v_and_b32 v{tmp}, 15, v{r}")
    e.i(f"v_xor_b32 v{tmp}, v{tmp}, v{hf}")
    e.i(f"v_lshlrev_b32 v{tmp}, 4, v{tmp}")
    e.i(f"v_lshl_add_u32 v{tmp}, v{r}, 8, v{tmp}")
    e.i(f"v_add_u32 v{V_K0}, s{S_T0}, v{tmp}")
    e.i(f"s_lshl_b32 s{S_T1}, s{S_KH}, 1")
    e.i(f"v_xor_b32 v{tmp}, s{S_T1}, v{i2}")
    e.i(f"v_lshlrev_b32 v{tmp}, 6, v{tmp}")
    e.i(f"v_lshl_add_u32 v{tmp}, v{G1}, 5, v{tmp}")
    e.i(f"v_lshl_add_u32 v{tmp}, v{i2}, 8, v{tmp}")
    e.i(f"v_lshl_add_u32 v{tmp2}, v{hf}, 10, v{tmp}")
    e.i(f"v_lshl_add_u32 v{tmp2}, v{i3}, 3, v{tmp2}")
    e.i(f"s_add_u32 s{S_T0}, s{S_T0}, 16384")
    e.i(f"v_add_u32 v{V_V0}, s{S_T0}, v{tmp2}")
    e.i(f"v_lshl_add_u32 v{tmp2}, v{hf}, 11, v{tmp}")
    e.i(f"v_and_b32 v{tmp}, 1, v{i3}")
    e.i(f"v_lshl_add_u32 v{tmp2}, v{tmp}, 4, v{tmp2}")
    e.i(f"v_lshrrev_b32 v{tmp}, 1, v{i3}")
    e.i(f"v_lshl_add_u32 v{V_W0}, v{tmp}, 3, v{tmp2}")
    e.i(f"v_bfe_u32 v{tmp}, v{r}, 1, 3")
    e.i(f"v_xor_b32 v{tmp}, v{tmp}, v{hf}")
    e.i(f"v_lshlrev_b32 v{tmp}, 4, v{tmp}")
    e.i(f"v_lshl_add_u32 v{tmp}, v{r}, 7, v{tmp}")
    e.i(f"s_lshl_b32 s{S_T0}, s{S_QB}, 12")
    e.i(f"s_add_u32 s{S_T0}, s{S_T0}, 16384")
    e.i(f"v_add_u32 v{V_X0}, s{S_T0}, v{tmp}")
    e.i(f"v_lshlrev_b32 v{tmp}, 4, v0")
    e.i(f"s_lshl_b32 s{S_T0}, s{S_QB}, 13")
    e.i(f"s_lshl_b32 s{S_T1}, s{S_KH}, 12")
    e.i(f"s_add_u32 s{S_T1}, s{S_T1}, s{S_T0}")
    e.i(f"v_add_u32 v{V_OST}, s{S_T1}, v{tmp}")
    e.i(f"v_add_u32 v{V_QXW}, {3*SLOT}, v{V_OST}")
    e.i(f"s_add_u32 s{S_T0}, s{S_T0}, {3*SLOT}")
    e.i(f"v_add_u32 v{V_QXR}, s{S_T0}, v{tmp}")
    e.i(f"s_lshl_b32 s{S_T0}, s{S_WAVE}, 13")
    e.i(f"s_add_u32 s{S_T0}, s{S_T0}, {3*SLOT}")
    e.i(f"v_add_u32 v{V_CBW}, s{S_T0}, v{tmp}")
    e.i(f"s_add_u32 s{S_T2}, s{S_WAVE}, 3")
    e.i(f"s_cmp_ge_u32 s{S_T2}, 6")
    e.i(f"s_cselect_b32 s{S_T1}, 6, 0")
    e.i(f"s_sub_u32 s{S_T2}, s{S_T2}, s{S_T1}")
    e.i(f"s_lshl_b32 s{S_T0}, s{S_T2}, 13")
    e.i(f"s_add_u32 s{S_T0}, s{S_T0}, {3*SLOT}")
    e.i(f"v_add_u32 v{V_CBR}, s{S_T0}, v{tmp}")
    e.i(f"v_lshlrev_b32 v{tmp}, 3, v0")
    e.i(f"s_lshl_b32 s{S_T0}, s{S_WAVE}, 9")
    e.i(f"s_add_u32 s{S_T0}, s{S_T0}, {3*SLOT + 49152}")
    e.i(f"v_add_u32 v{V_MLW}, s{S_T0}, v{tmp}")
    e.i(f"s_lshl_b32 s{S_T0}, s{S_T2}, 9")
    e.i(f"s_add_u32 s{S_T0}, s{S_T0}, {3*SLOT + 49152}")
    e.i(f"v_add_u32 v{V_MLR}, s{S_T0}, v{tmp}")
    e.i(f"s_mov_b32 s{S_THR}, {hex(f2u(THRESH))}")
    e.i(f"s_mov_b32 s{S_C}, {hex(f2u(CSCALE))}")
    e.i(f"s_mov_b32 s{S_RND}, 0")
    e.i(f"s_mov_b32 s{S_SLOT}, 0")
    e.i(f"s_lshl_b32 s{S_T0}, s{S_BR}, 3")
    e.i(f"s_add_u32 s{S_T0}, s{S_T0}, s{S_B}")
    e.i(f"s_lshl_b32 s{S_T0}, s{S_T0}, 5")
    e.i(f"s_lshl_b32 s{S_T1}, s{S_J}, 2")
    e.i(f"s_add_u32 s{S_T0}, s{S_T0}, s{S_T1}")
    e.i(f"s_add_u32 s{S_T0}, s{S_T0}, s{S_Q4}")
    e.i(f"s_mul_i32 s{S_OB}, s{S_T0}, 24576")
    emit_addr_q(e)
    e.i("s_barrier")
    e.lab("k1_round")
    emit_q_step(e, True)
    emit_slot_advance(e)
    emit_addr_q(e)
    e.i(f"s_mov_b32 s{S_CNT}, 8")
    e.lab("k1_qloop")
    e.i("s_barrier")
    emit_q_step(e, False)
    emit_slot_advance(e)
    emit_addr_q(e)
    e.i(f"s_sub_u32 s{S_CNT}, s{S_CNT}, 1")
    e.i(f"s_cmp_lg_u32 s{S_CNT}, 0")
    e.i("s_cbranch_scc1 k1_qloop")
    e.nop(4)
    for k in range(32):
        e.i(f"v_mul_f32 v{V_O+k}, s{S_C}, v{V_O+k}")
    for k in range(16):
        e.i(f"v_cvt_pk_bf16_f32 v{V_VF+k}, v{V_O+2*k}, v{V_O+2*k+1}")
    e.i("s_barrier")
    for f in range(4):
        e.ds(f"ds_write_b128 v{V_QXW}, {v(V_VF+4*f,4)} offset:{f*1024}")
    emit_addr_kv(e)
    e.wds0()
    e.i("s_barrier")
    for k in range(8):
        e.ds(f"ds_read_b128 {v(V_Q+4*k,4)}, v{V_QXR} offset:{k*1024}")
    e.wds0()
    emit_kv_step(e, True, "k1f")
    emit_slot_advance(e)
    emit_addr_kv(e)
    e.i(f"s_mov_b32 s{S_CNT}, 15")
    e.lab("k1_kvloop")
    e.i("s_barrier")
    emit_kv_step(e, False, "k1s")
    emit_slot_advance(e)
    emit_addr_kv(e)
    e.i(f"s_sub_u32 s{S_CNT}, s{S_CNT}, 1")
    e.i(f"s_cmp_lg_u32 s{S_CNT}, 0")
    e.i("s_cbranch_scc1 k1_kvloop")
    e.i("s_barrier")
    emit_cb_write(e)
    e.i("s_barrier")
    emit_cb_read(e)
    e.vm = []
    emit_addr_q(e)
    e.i(f"s_add_u32 s{S_OB}, s{S_OB}, {16*24576}")
    e.i(f"s_add_u32 s{S_RND}, s{S_RND}, 1")
    e.i(f"s_cmp_lt_u32 s{S_RND}, 2")
    e.i("s_cbranch_scc1 k1_round")
    e.i("s_endpgm")
    emit_rare(e, "k1s")

def gen_k1(e, kvflags, wflags):
    e.end_label = "k1_end"
    kernel_head(e, "k1_kernel")
    common_prologue(e, 256, "wq")
    e.i(f"s_lshl_b32 s{S_T0}, s{S_J}, 2")
    e.i(f"s_add_u32 s{S_T0}, s{S_T0}, s{S_Q4}")
    e.i(f"s_lshl_b32 s{S_H0}, s{S_T0}, 8")
    e.i(f"s_add_u32 s{S_H1}, s{S_H0}, {16*256}")
    e.i(f"s_lshl_b32 s{S_T1}, s{S_B}, 5")
    e.i(f"s_add_u32 s{S_T1}, s{S_T1}, s{S_T0}")
    e.i(f"s_lshl_b32 s{S_PAIR0}, s{S_T1}, 18")
    e.i(f"s_add_u32 s{S_PAIR1}, s{S_PAIR0}, {16 << 18}")
    e.i(f"s_cmp_eq_u32 s{S_WAVE}, 6")
    e.i("s_cbranch_scc1 k1_ld0")
    e.i(f"s_cmp_eq_u32 s{S_WAVE}, 7")
    e.i("s_cbranch_scc1 k1_ld1")
    emit_attn(e)
    e.lab("k1_ld0")
    e.vm = []
    emit_loader(e, 0, kvflags, wflags)
    e.lab("k1_ld1")
    e.vm = []
    emit_loader(e, 1, kvflags, wflags)
    e.lab("k1_end")
    e.i("s_endpgm")

K2_SLOT = 36864
def gen_k2(e, wflags):
    e.end_label = "k2_end"
    kernel_head(e, "k2_kernel")
    common_prologue(e, 256, "wo")
    e.i(f"s_cmp_ge_u32 s{S_WAVE}, 6")
    e.i("s_cbranch_scc1 k2_ld")
    i_, G, gp, hf, tmp = 16, 17, 18, 19, 20
    VB0, VB1, VA0, VST = 1, 2, 3, 4
    BF = 64
    AF = 192
    ACC = 24
    e.i(f"v_and_b32 v{i_}, 15, v0")
    e.i(f"v_lshrrev_b32 v{gp}, 5, v0")
    e.i(f"v_bfe_u32 v{hf}, v0, 4, 1")
    e.i(f"s_lshr_b32 s{S_T0}, s{S_WAVE}, 1")
    e.i(f"s_lshl_b32 s{S_T0}, s{S_T0}, 13")
    e.i(f"s_and_b32 s{S_T1}, s{S_WAVE}, 1")
    e.i(f"s_lshl_b32 s{S_T1}, s{S_T1}, 8")
    e.i(f"s_add_u32 s{S_T0}, s{S_T0}, s{S_T1}")
    e.i(f"v_lshlrev_b32 v{tmp}, 4, v{i_}")
    e.i(f"v_lshl_add_u32 v{tmp}, v{hf}, 9, v{tmp}")
    e.i(f"v_lshl_add_u32 v{tmp}, v{gp}, 10, v{tmp}")
    e.i(f"v_add_u32 v{VB0}, s{S_T0}, v{tmp}")
    e.i(f"v_add_u32 v{VB1}, 4096, v{VB0}")
    e.i(f"s_lshl_b32 s{S_T0}, s{S_BR}, 3")
    e.i(f"s_add_u32 s{S_T0}, s{S_T0}, s{S_B}")
    e.i(f"s_lshl_b32 s{S_T2}, s{S_T0}, 5")
    e.i(f"s_lshl_b32 s{S_T1}, s{S_J}, 2")
    e.i(f"s_add_u32 s{S_T2}, s{S_T2}, s{S_T1}")
    e.i(f"s_mul_i32 s{S_OB}, s{S_T2}, 24576")
    for hh in range(8):
        hoff = (16 * (hh >> 2) + (hh & 3)) * 24576
        e.i(f"s_add_u32 s{S_SO}, s{S_OB}, {hoff}")
        for db in range(4):
            vb = VB0 if db < 2 else VB1
            e.vmem(f"buffer_load_dwordx4 {v(BF+16*hh+4*db,4)}, v{vb}, s[{SRD_WS}:{SRD_WS+3}], s{S_SO} offen offset:{(db&1)*2048}", hh)
    e.i(f"v_lshrrev_b32 v{tmp}, 2, v{i_}")
    e.i(f"v_lshl_add_u32 v{tmp}, v{hf}, 2, v{tmp}")
    e.i(f"v_lshl_add_u32 v{tmp}, v{gp}, 4, v{tmp}")
    e.i(f"v_mul_u32_u24 v{tmp}, 288, v{tmp}")
    e.i(f"v_and_b32 v{G}, 3, v0")
    e.i(f"v_lshl_add_u32 v{VA0}, v{G}, 3, v{tmp}")
    e.i(f"s_lshl_b32 s{S_T0}, s{S_T0}, 2")
    e.i(f"s_add_u32 s{S_T0}, s{S_T0}, s{S_Q4}")
    e.i(f"s_lshl_b32 s{S_T0}, s{S_T0}, 2")
    e.i(f"s_add_u32 s{S_T0}, s{S_T0}, s{S_J}")
    e.i(f"s_mul_i32 s{S_T0}, s{S_T0}, 55296")
    e.i(f"s_mul_i32 s{S_T1}, s{S_WAVE}, 9216")
    e.i(f"s_add_u32 s{S_T0}, s{S_T0}, s{S_T1}")
    e.i(f"s_add_u32 s{S_T3}, s{S_T0}, {POFF}")
    e.i(f"v_lshlrev_b32 v{VST}, 4, v0")
    for hh in range(8):
        slot = (hh % 4) * K2_SLOT
        e.i(f"v_add_u32 v5, {slot}, v{VA0}")
        e.i("s_barrier")
        for db in range(4):
            for nt in range(9):
                for u in range(2):
                    e.ds(f"ds_read_b64_tr_b16 {v(AF+4*nt+2*u,2)}, v5 offset:{db*9216+u*2304+nt*32}", nt)
                if nt == 5:
                    if db == 0:
                        e.wvm(hh)
                    for n2 in range(3):
                        e.wds(n2)
                        e.i(f"v_mfma_f32_16x16x32_bf16 {v(ACC+4*n2,4)}, {v(AF+4*n2,4)}, {v(BF+16*hh+4*db,4)}, " + ("0" if hh == 0 and db == 0 else v(ACC+4*n2,4)))
            for n2 in range(3, 9):
                e.wds(n2)
                e.i(f"v_mfma_f32_16x16x32_bf16 {v(ACC+4*n2,4)}, {v(AF+4*n2,4)}, {v(BF+16*hh+4*db,4)}, " + ("0" if hh == 0 and db == 0 else v(ACC+4*n2,4)))
    e.nop(8)
    for nt in range(9):
        if nt % 4 == 0:
            e.i(f"s_add_u32 s{S_SO}, s{S_T3}, {nt*1024}")
        e.i(f"buffer_store_dwordx4 {v(ACC+4*nt,4)}, v{VST}, s[{SRD_WS}:{SRD_WS+3}], s{S_SO} offen offset:{(nt%4)*1024}")
    e.i("s_endpgm")
    e.lab("k2_ld")
    e.vm = []
    m18 = magic(18, 576)
    for n in range(9):
        e.i(f"v_add_u32 v12, {64*n}, v0")
        e.i(f"v_mul_u32_u24 v13, {m18}, v12")
        e.i("v_lshrrev_b32 v13, 16, v13")
        e.i("v_mul_u32_u24 v14, 18, v13")
        e.i("v_sub_u32 v14, v12, v14")
        e.i("v_mul_u32_u24 v13, 1152, v13")
        e.i("v_lshl_add_u32 v13, v14, 4, v13")
        e.i(f"v_subrev_u32 v{2+n}, {(n%4)*1024}, v13")
    e.i(f"s_sub_u32 s{S_T0}, s{S_WAVE}, 6")
    e.i(f"s_lshl_b32 s{S_T1}, s{S_J}, 9")
    e.i(f"s_lshl_b32 s{S_T2}, s{S_T0}, 6")
    e.i(f"s_add_u32 s{S_T1}, s{S_T1}, s{S_T2}")
    e.i(f"s_mul_i32 s{S_T1}, s{S_T1}, 1152")
    e.i(f"s_mul_i32 s{S_T2}, s{S_Q4}, 288")
    e.i(f"s_add_u32 s{S_T1}, s{S_T1}, s{S_T2}")
    e.i(f"s_mul_i32 s{S_T2}, s{S_T0}, {2*9216}")
    def issue(hh):
        slot = (hh % 4) * K2_SLOT
        hrow = (16 * (hh >> 2) + (hh & 3)) * 128
        for ch in range(2):
            e.i(f"s_add_u32 s{S_SO}, s{S_T1}, {(hrow + ch*32)*1152}")
            for n in range(9):
                if n % 4 == 0:
                    e.i(f"s_add_u32 m0, s{S_T2}, {slot + ch*9216 + (n//4)*4096}")
                    e.i("s_nop 0")
                e.vmem(f"buffer_load_dwordx4 v{2+n}, s[{SRD_W}:{SRD_W+3}], s{S_SO} offen offset:{(n%4)*1024} {wflags} lds", hh)
    for hh in range(4):
        issue(hh)
    for hh in range(8):
        e.wvm(hh)
        e.i("s_barrier")
        if hh >= 1 and hh + 3 < 8:
            issue(hh + 3)
    e.lab("k2_end")
    e.i("s_endpgm")

def gen_k3(e):
    kernel_head(e, "k3_kernel")
    e.i("s_cmp_ge_u32 s2, 864")
    e.i("s_cbranch_scc1 k3_end")
    e.i("s_load_dwordx2 s[4:5], s[0:1], 80")
    e.i("s_load_dwordx2 s[8:9], s[0:1], 96")
    e.i("v_lshrrev_b32 v1, 6, v0")
    e.i("s_lshl_b32 s12, s2, 2")
    e.i("v_readfirstlane_b32 s13, v1")
    e.i("v_and_b32 v0, 63, v0")
    e.i("s_add_u32 s12, s12, s13")
    m54 = magic(54, 3456, 20)
    e.i(f"s_mul_i32 s13, s12, {m54}")
    e.i("s_lshr_b32 s13, s13, 20")
    e.i("s_mul_i32 s14, s13, 54")
    e.i("s_sub_u32 s14, s12, s14")
    m9 = magic(9, 54)
    e.i(f"s_mul_i32 s15, s14, {m9}")
    e.i("s_lshr_b32 s15, s15, 16")
    e.i("s_mul_i32 s16, s15, 9")
    e.i("s_sub_u32 s16, s14, s16")
    e.i(f"s_mul_i32 s17, s13, {4*55296}")
    e.i("s_lshl_b32 s18, s14, 10")
    e.i("s_add_u32 s17, s17, s18")
    e.i(f"s_add_u32 s17, s17, {POFF}")
    e.i("v_lshlrev_b32 v1, 4, v0")
    e.i("s_waitcnt lgkmcnt(0)")
    e.i("s_mov_b32 s6, 1769472")
    e.i("s_mov_b32 s7, 0x20000")
    e.i(f"s_mov_b32 s10, {WS_BYTES}")
    e.i("s_mov_b32 s11, 0x20000")
    for j in range(4):
        e.i(f"buffer_load_dwordx4 {v(8+4*j,4)}, v1, s[8:11], s17 offen")
        if j < 3:
            e.i("s_add_u32 s17, s17, 55296")
    e.i("s_and_b32 s18, s13, 3")
    e.i("s_lshr_b32 s19, s13, 2")
    e.i("s_and_b32 s20, s19, 7")
    e.i("s_lshr_b32 s19, s19, 3")
    e.i("s_mul_i32 s20, s20, 96")
    e.i("s_lshl_b32 s21, s15, 4")
    e.i("s_add_u32 s20, s20, s21")
    e.i("s_mul_i32 s20, s20, 2304")
    e.i("s_mul_i32 s19, s19, 1152")
    e.i("s_add_u32 s20, s20, s19")
    e.i("s_mul_i32 s18, s18, 288")
    e.i("s_add_u32 s20, s20, s18")
    e.i("s_lshl_b32 s21, s16, 5")
    e.i("s_add_u32 s20, s20, s21")
    e.i("v_and_b32 v2, 15, v0")
    e.i("v_mul_u32_u24 v2, 2304, v2")
    e.i("v_lshrrev_b32 v3, 4, v0")
    e.i("v_lshl_add_u32 v2, v3, 3, v2")
    e.i("s_waitcnt vmcnt(2)")
    for k in range(4):
        e.i(f"v_add_f32 v{8+k}, v{8+k}, v{12+k}")
    e.i("s_waitcnt vmcnt(0)")
    for k in range(4):
        e.i(f"v_add_f32 v{16+k}, v{16+k}, v{20+k}")
    for k in range(4):
        e.i(f"v_add_f32 v{8+k}, v{8+k}, v{16+k}")
    e.i("v_cvt_pk_bf16_f32 v4, v8, v9")
    e.i("v_cvt_pk_bf16_f32 v5, v10, v11")
    e.i("buffer_store_dwordx2 v[4:5], v2, s[4:7], s20 offen")
    e.lab("k3_end")
    e.i("s_endpgm")

def gen(kvflags="nt", wflags="", only=None):
    e = E()
    e.raw(HEADER.rstrip())
    ks = only or ["k1", "k2", "k3"]
    if "k1" in ks: e.raw(f"; @launch kernel=k1_kernel grid=(256,1,1) block=(512,1,1) lds={NSLOT*SLOT}")
    if "k2" in ks: e.raw(f"; @launch kernel=k2_kernel grid=(256,1,1) block=(512,1,1) lds={4*K2_SLOT}")
    if "k3" in ks: e.raw("; @launch kernel=k3_kernel grid=(864,1,1) block=(256,1,1) lds=0")
    e.raw('.amdgcn_target "amdgcn-amd-amdhsa--gfx950"')
    e.raw(".text")
    gen_k1(e, kvflags, wflags)
    e.lg = []; e.vm = []
    gen_k2(e, wflags)
    e.lg = []; e.vm = []
    gen_k3(e)
    e.raw('.section .rodata,"a"')
    e.raw(kernel_desc("k1_kernel", NV1, 96))
    e.raw(kernel_desc("k2_kernel", 232, 96))
    e.raw(kernel_desc("k3_kernel", 24, 32))
    return e.text()

if __name__ == "__main__":
    out = sys.argv[1] if len(sys.argv) > 1 else "cdna_kernels/" + NAME + ".s"
    open(out, "w").write(gen())
    open("p1_k1only.s", "w").write(gen(only=["k1"]))
    open("p1_k12.s", "w").write(gen(only=["k1", "k2"]))
    open("p1_wnt.s", "w").write(gen(wflags="nt"))
    open("p1_k1only_wnt.s", "w").write(gen(wflags="nt", only=["k1"]))
```
